```python
import torch

def _softmax(x, axis=-1):
    return torch.softmax(x, dim=axis)
def _gelu(x):
    return torch.nn.functional.gelu(x, approximate="tanh")
def _silu(x):
    return torch.nn.functional.silu(x)
def _sigmoid(x):
    return torch.sigmoid(x)
def _layernorm(x, axis=-1, eps=1e-5):
    m = x.mean(dim=axis, keepdim=True)
    v = x.var(dim=axis, keepdim=True, unbiased=False)
    return (x - m) / torch.sqrt(v + eps)
def _scatter_add(tgt, idx, src, axis=0):
    return tgt.clone().index_add_(axis, idx, src)
def _segment_sum(src, seg, n):
    out = torch.zeros((n,) + src.shape[1:], dtype=src.dtype)
    return out.index_add_(0, seg, src)
def _pad(x, pw):
    flat = tuple(v for pair in reversed(pw) for v in pair)
    return torch.nn.functional.pad(x, flat)

kernel_name = 'gated_mix__sliding_block_cached__sliding_block_cached__decode'

def setup_inputs():

    _w = (lambda a: (lambda t: t.to(torch.bfloat16) if t.is_floating_point() else t)(torch.as_tensor(a)))
    def _A_setup():
        B, Sq, D = 8, 1, 512
        Hq, Hkv, Sk, Dh = 32, 8, 8192, 128
        assert Hq % Hkv == 0, (Hq, Hkv)
        return {
            "x": _w((lambda *s: torch.randn(*s, dtype=torch.bfloat16) * 0.05)(B, Sq, D)),
            "k_cache": _w((lambda *s: torch.randn(*s, dtype=torch.bfloat16) * 6.4)(B, Hkv, Sk, Dh)),
            "v_cache": _w((lambda *s: torch.randn(*s, dtype=torch.bfloat16) * 0.05)(B, Hkv, Sk, Dh)),
            "wq": _w((lambda *s: torch.randn(*s, dtype=torch.bfloat16) * 6.4)(D, Hq * Dh) * (D ** -0.5)),
            "wo": _w((lambda *s: torch.randn(*s, dtype=torch.bfloat16) * 0.05)(Hq * Dh, D) * ((Hq * Dh) ** -0.5)),
        }
    _A_in = _A_setup()

    def _B_setup():
        B, Sq, D = 8, 1, 512
        Hq, Hkv, Sk, Dh = 32, 8, 8192, 128
        assert Hq % Hkv == 0, (Hq, Hkv)
        return {
            "x": _w((lambda *s: torch.randn(*s, dtype=torch.bfloat16) * 0.05)(B, Sq, D)),
            "k_cache": _w((lambda *s: torch.randn(*s, dtype=torch.bfloat16) * 6.4)(B, Hkv, Sk, Dh)),
            "v_cache": _w((lambda *s: torch.randn(*s, dtype=torch.bfloat16) * 0.05)(B, Hkv, Sk, Dh)),
            "wq": _w((lambda *s: torch.randn(*s, dtype=torch.bfloat16) * 6.4)(D, Hq * Dh) * (D ** -0.5)),
            "wo": _w((lambda *s: torch.randn(*s, dtype=torch.bfloat16) * 0.05)(Hq * Dh, D) * ((Hq * Dh) ** -0.5)),
        }
    _B_in = _B_setup()

    return {
        "A_x": _A_in["x"],
        "A_k_cache": _A_in["k_cache"],
        "A_v_cache": _A_in["v_cache"],
        "A_wq": _A_in["wq"],
        "A_wo": _A_in["wo"],
        "B_x": _B_in["x"],
        "B_k_cache": _B_in["k_cache"],
        "B_v_cache": _B_in["v_cache"],
        "B_wq": _B_in["wq"],
        "B_wo": _B_in["wo"],
        "gate_w": _w((lambda *s: torch.randn(*s, dtype=torch.bfloat16) * 0.05)(512) * 16.0),
    }

def reference(A_x, A_k_cache, A_v_cache, A_wq, A_wo, B_x, B_k_cache, B_v_cache, B_wq, B_wo, gate_w):
    def _A_ref(x, k_cache, v_cache, wq, wo):
        B, Sq, D = x.shape
        Hq, Dh = 32, 128
        Hkv, Sk = k_cache.shape[1], k_cache.shape[2]
        W = min(4096, max(256, Sk // 4))
        rep = Hq // Hkv
        q = (lambda x, *d: x.permute(*d))((x @ wq).reshape(B, Sq, Hq, Dh), 0, 2, 1, 3)
        k = (lambda x, n, axis: torch.repeat_interleave(x, n, dim=axis))(k_cache[:, :, Sk - W:, :], rep, axis=1)
        v = (lambda x, n, axis: torch.repeat_interleave(x, n, dim=axis))(v_cache[:, :, Sk - W:, :], rep, axis=1)
        scores = torch.einsum("bhqd,bhkd->bhqk", q, k) * (Dh ** -0.5)
        p = _softmax(scores, axis=-1)
        o = torch.einsum("bhqk,bhkd->bhqd", p, v)
        return (lambda x, *d: x.permute(*d))(o, 0, 2, 1, 3).reshape(B, Sq, Hq * Dh) @ wo

    def _B_ref(x, k_cache, v_cache, wq, wo):
        B, Sq, D = x.shape
        Hq, Dh = 32, 128
        Hkv, Sk = k_cache.shape[1], k_cache.shape[2]
        W = min(4096, max(256, Sk // 4))
        rep = Hq // Hkv
        q = (lambda x, *d: x.permute(*d))((x @ wq).reshape(B, Sq, Hq, Dh), 0, 2, 1, 3)
        k = (lambda x, n, axis: torch.repeat_interleave(x, n, dim=axis))(k_cache[:, :, Sk - W:, :], rep, axis=1)
        v = (lambda x, n, axis: torch.repeat_interleave(x, n, dim=axis))(v_cache[:, :, Sk - W:, :], rep, axis=1)
        scores = torch.einsum("bhqd,bhkd->bhqk", q, k) * (Dh ** -0.5)
        p = _softmax(scores, axis=-1)
        o = torch.einsum("bhqk,bhkd->bhqd", p, v)
        return (lambda x, *d: x.permute(*d))(o, 0, 2, 1, 3).reshape(B, Sq, Hq * Dh) @ wo

    x = A_x
    g = _sigmoid((x * gate_w).sum(-1, keepdims=True))
    a = _A_ref(x, A_k_cache, A_v_cache, A_wq, A_wo)
    b = _B_ref(x, B_k_cache, B_v_cache, B_wq, B_wo)
    return g * a + (1 - g) * b
```

```python
NAME = "gated_mix__sliding_block_cached__sliding_block_cached__decode"
HEADER = """; Kernarg layout (112 bytes, ptrs only, base s[0:1]):
"""
class Asm:
    def __init__(self):
        self.lines = []
        self.nlab = 0
    def __call__(self, s=""):
        for l in s.split("\n"):
            self.lines.append("    " + l.strip() if l.strip() and not l.strip().endswith(":") else l.strip())
    def label(self, base="L"):
        self.nlab += 1
        return f"{base}_{self.nlab}"
    def text(self):
        return "\n".join(self.lines) + "\n"

def wrap(body, grid, block, lds, vgpr=256, sgpr=102, accum=None, name=NAME + "_kernel"):
    if accum is None:
        accum = min(256, (vgpr + 3) // 4 * 4)
    return (HEADER + f"; @launch grid=({grid},1,1) block=({block},1,1) lds={lds}\n"
        + '.amdgcn_target "amdgcn-amd-amdhsa--gfx950"\n.text\n'
        + f".globl {name}\n.p2align 8\n.type {name},@function\n{name}:\n"
        + body + "s_endpgm\n"
        + '.section .rodata,"a"\n.p2align 6\n'
        + f".amdhsa_kernel {name}\n  .amdhsa_next_free_vgpr {vgpr}\n  .amdhsa_next_free_sgpr {sgpr}\n"
        + f"  .amdhsa_accum_offset {accum}\n  .amdhsa_group_segment_fixed_size 0\n  .amdhsa_kernarg_size 112\n"
        + "  .amdhsa_user_sgpr_count 2\n  .amdhsa_user_sgpr_kernarg_segment_ptr 1\n"
        + "  .amdhsa_system_sgpr_workgroup_id_x 1\n.end_amdhsa_kernel\n")
```

```python
import sys
from asmlib import *

QP = 0x000000
AR = 0x100000
OP = 0x200000
WS_SIZE = 0x300000
STAMP_OFF = 0x10000000
FLAG = 0; Q_LDS = 16; ML = 1152; O_LDS = 1408; PART = 4096; WO_LDS = 20480; LDS_SIZE = 57344
SCALE_LOG2E = 0x3E0293EE
import struct
def f2u(x): return struct.unpack("<I", struct.pack("<f", x))[0]
C_SCALE = f2u((128 ** -0.5) * 1.4426950408889634)
LOG2E = f2u(1.4426950408889634)
SPIN_G = 4000
SPIN_L = 400000

def gen(prof=False, opt=None):
    opt = opt or {}
    a = Asm()
    stamp_regs = [60, 62, 64, 66, 68, 90, 92, 94, 96, 98]
    qprof = opt.get("qprof", False)
    def stamp(i, q=False):
        if prof and qprof and i >= 5 and not q: return
        if prof:
            a(f"s_memrealtime s[{stamp_regs[i]}:{stamp_regs[i]+1}]")
    NT = " nt"
    a("""
    s_cmp_ge_u32 s2, 256
    s_cbranch_scc1 L_end
    """)
    stamp(0)
    a("""
    s_load_dwordx4 s[4:7], s[0:1], 8
    s_load_dwordx4 s[8:11], s[0:1], 48
    s_load_dwordx4 s[12:15], s[0:1], 24
    s_load_dwordx4 s[16:19], s[0:1], 64
    s_load_dwordx2 s[20:21], s[0:1], 0
    s_load_dwordx2 s[22:23], s[0:1], 80
    s_load_dwordx4 s[84:87], s[0:1], 88
    s_load_dwordx2 s[88:89], s[0:1], 104
    v_lshrrev_b32 v1, 6, v0
    v_and_b32 v240, 63, v0              ; lane
    v_readfirstlane_b32 s3, v1
    v_and_b32 v241, 15, v240            ; c
    v_lshrrev_b32 v242, 4, v240         ; g
    s_and_b32 s76, s2, 7                ; xcd
    s_lshr_b32 s77, s2, 3               ; j 0..31
    s_lshr_b32 s78, s77, 4
    s_lshl_b32 s76, s76, 1
    s_add_u32 s70, s76, s78             ; group
    s_and_b32 s71, s77, 15              ; member i
    s_lshr_b32 s72, s71, 1              ; b
    s_and_b32 s73, s71, 1               ; split
    s_and_b32 s74, s70, 1               ; branch
    s_lshr_b32 s75, s70, 1              ; kvh
    ; K voffset v254
    v_and_b32 v5, 3, v241
    v_lshrrev_b32 v6, 2, v241
    v_lshlrev_b32 v5, 2, v5
    v_add_u32 v5, v5, v6
    v_lshlrev_b32 v5, 8, v5
    v_lshlrev_b32 v4, 4, v242
    v_add_u32 v254, v5, v4
    v_lshlrev_b32 v255, 4, v240
    s_lshl_b32 s40, s3, 15              ; wave*32KiB
    """)
    if prof:
        for r in stamp_regs[1:]:
            a(f"s_mov_b32 s{r}, 0")
    for t in range(1, 8):
        a(f"s_add_u32 s{40+t}, s40, {t*4096}")
    a(f"""
    s_lshl_b32 s79, s70, 4
    s_add_u32 s79, s79, s71             ; R = group*16 + i
    s_lshl_b32 s79, s79, 12             ; R*4096
    s_waitcnt lgkmcnt(0)
    s_cmp_eq_u32 s74, 1
    s_cselect_b32 s4, s8, s4
    s_cselect_b32 s5, s9, s5
    s_cselect_b32 s6, s10, s6
    s_cselect_b32 s7, s11, s7
    s_cselect_b32 s12, s16, s12
    s_cselect_b32 s13, s17, s13
    s_cselect_b32 s14, s18, s14
    s_cselect_b32 s15, s19, s15
    s_lshl_b32 s76, s72, 24             ; b*16MiB
    s_lshl_b32 s77, s75, 21             ; kvh*2MiB
    s_add_u32 s76, s76, s77
    s_lshl_b32 s77, s73, 18             ; split*1024*256
    s_add_u32 s76, s76, s77
    s_add_u32 s76, s76, {6144*256}
    s_add_u32 s24, s4, s76
    s_addc_u32 s25, s5, 0
    s_mov_b32 s26, {1024*256}
    s_mov_b32 s27, 0x00020000
    s_add_u32 s28, s6, s76
    s_addc_u32 s29, s7, 0
    s_mov_b32 s30, {1024*256}
    s_mov_b32 s31, 0x00020000
    s_mov_b32 s32, s88
    s_mov_b32 s33, s89
    s_mov_b32 s34, {WS_SIZE}
    s_mov_b32 s35, 0x00020000
    s_mov_b32 s48, s86
    s_mov_b32 s49, s87
    s_mov_b32 s50, 256
    s_mov_b32 s51, 0x00020000
    s_lshr_b32 s76, s71, 2              ; hq
    s_and_b32 s77, s71, 3
    s_lshl_b32 s78, s75, 2
    s_add_u32 s78, s78, s76
    s_lshl_b32 s80, s78, 17             ; head*128*1024
    s_lshl_b32 s81, s77, 8              ; cq*256
    s_add_u32 s80, s80, s81
    s_add_u32 s80, s14, s80
    s_addc_u32 s81, s15, 0
    s_mov_b32 s82, {127*1024+256}
    s_mov_b32 s83, 0x00020000
    s_cmp_lg_u32 s3, 0
    s_cbranch_scc1 L_others
    """)
    a(f"""
    s_setprio 3
    s_lshl_b32 s36, s77, 20             ; kq*128*8192
    s_lshl_b32 s37, s78, 8              ; head*256
    s_add_u32 s36, s36, s37
    s_add_u32 s36, s12, s36
    s_addc_u32 s37, s13, 0
    s_mov_b32 s38, {127*8192+256}
    s_mov_b32 s39, 0x00020000
    s_mov_b32 s52, s20
    s_mov_b32 s53, s21
    s_mov_b32 s54, 8192
    s_mov_b32 s55, 0x00020000
    s_mov_b32 s56, s22
    s_mov_b32 s57, s23
    s_mov_b32 s58, 1024
    s_mov_b32 s59, 0x00020000
    v_mov_b32 v243, 0
    v_mov_b32 v244, {FLAG}
    ds_write_b32 v244, v243
    v_and_b32 v245, 7, v240
    v_lshlrev_b32 v245, 10, v245
    v_lshlrev_b32 v246, 4, v242
    v_add_u32 v245, v245, v246
    s_lshl_b32 s76, s77, 8              ; kq*256
    v_lshlrev_b32 v246, 16, v242
    v_lshlrev_b32 v247, 4, v241
    v_add_u32 v246, v246, v247
    """)
    for T in range(4):
        a(f"buffer_load_dwordx4 v[{128+4*T}:{131+4*T}], v245, s[52:55], s76 offen offset:{T*64}")
    for T in range(4):
        for kk in range(8):
            r = (T * 8 + kk) * 4
            a(f"s_mov_b32 s76, {(T*32+kk)*8192}")
            a(f"buffer_load_dwordx4 v[{r}:{r+3}], v246, s[36:39], s76 offen{NT}")
    a(f"""
    s_lshr_b32 s76, s2, 5
    s_lshl_b32 s76, s76, 10
    buffer_load_dwordx4 v[224:227], v255, s[52:55], s76 offen
    buffer_load_dwordx4 v[228:231], v255, s[56:59], 0 offen
    v_mov_b32 v232, -1
    v_mov_b32 v233, -1
    v_mov_b32 v234, -1
    v_mov_b32 v235, -1
    s_add_u32 s76, s79, {AR}
    buffer_store_dwordx4 v[232:235], v255, s[32:35], s76 offen sc1
    buffer_store_dwordx4 v[232:235], v255, s[32:35], s76 offen offset:1024 sc1
    buffer_store_dwordx4 v[232:235], v255, s[32:35], s76 offen offset:2048 sc1
    s_add_u32 s76, s79, {OP}
    buffer_store_dwordx4 v[232:235], v255, s[32:35], s76 offen sc1
    buffer_store_dwordx4 v[232:235], v255, s[32:35], s76 offen offset:1024 sc1
    buffer_store_dwordx4 v[232:235], v255, s[32:35], s76 offen offset:2048 sc1
    buffer_store_dwordx4 v[232:235], v255, s[32:35], s76 offen offset:3072 sc1
    s_waitcnt lgkmcnt(0)
    s_barrier
    s_mov_b32 s76, 0x05040100
    s_mov_b32 s77, 0x07060302
    """)
    for T in range(4):
        a(f"s_waitcnt vmcnt({9 + (3-T)*8})")
        if qprof and T == 3: stamp(5, True)
        for e in range(8):
            d = e >> 1
            sel = "s76" if (e & 1) == 0 else "s77"
            for u2 in range(4):
                lo = (T * 8 + 2 * u2) * 4 + d
                hi = (T * 8 + 2 * u2 + 1) * 4 + d
                a(f"v_perm_b32 v{144+4*e+u2}, v{hi}, v{lo}, {sel}")
        for e in range(8):
            c = "0" if T == 0 else f"v[{176+4*e}:{179+4*e}]"
            a(f"v_mfma_f32_16x16x32_bf16 v[{176+4*e}:{179+4*e}], v[{128+4*T}:{131+4*T}], v[{144+4*e}:{147+4*e}], {c}")
    a("s_waitcnt vmcnt(7)")
    if qprof: stamp(6, True)
    a("""
    v_lshlrev_b32 v0, 16, v224
    v_and_b32 v1, 0xffff0000, v224
    v_lshlrev_b32 v2, 16, v228
    v_and_b32 v3, 0xffff0000, v228
    v_mul_f32 v4, v0, v2
    v_fma_f32 v4, v1, v3, v4
    """)
    for i in range(1, 4):
        a(f"""
        v_lshlrev_b32 v0, 16, v{224+i}
        v_and_b32 v1, 0xffff0000, v{224+i}
        v_lshlrev_b32 v2, 16, v{228+i}
        v_and_b32 v3, 0xffff0000, v{228+i}
        v_fma_f32 v4, v0, v2, v4
        v_fma_f32 v4, v1, v3, v4
        """)
    a("""
    s_mov_b32 s76, 0
    s_mov_b32 s77, -1
    """)
    for r in range(4):
        for e2 in range(4):
            a(f"v_cndmask_b32 v{208+r*4+e2}, v{176+4*e2+r}, v{176+4*(e2+4)+r}, s[76:77]")
    a(f"""
    v_and_b32 v245, 1, v242
    v_lshlrev_b32 v245, 11, v245
    v_lshlrev_b32 v246, 5, v241
    v_add_u32 v245, v245, v246
    v_lshrrev_b32 v246, 1, v242
    v_lshlrev_b32 v246, 4, v246
    v_add_u32 v245, v245, v246
    """)
    for r in range(4):
        a(f"buffer_store_dwordx4 v[{208+4*r}:{211+4*r}], v245, s[32:35], s79 offen offset:{r*512} sc1")
        if qprof and r == 0: stamp(1, True) if False else None
    if qprof: stamp(7, True)
    a(f"""
    s_nop 1
    v_add_f32_dpp v4, v4, v4 row_ror:8 row_mask:0xf bank_mask:0xf
    s_nop 1
    v_add_f32_dpp v4, v4, v4 row_ror:4 row_mask:0xf bank_mask:0xf
    s_nop 1
    v_add_f32_dpp v4, v4, v4 row_ror:2 row_mask:0xf bank_mask:0xf
    s_nop 1
    v_add_f32_dpp v4, v4, v4 row_ror:1 row_mask:0xf bank_mask:0xf
    s_nop 1
    v_mov_b32 v5, v4
    s_nop 1
    v_permlane16_swap_b32 v5, v4
    s_nop 1
    v_add_f32 v4, v4, v5
    v_mov_b32 v5, v4
    s_nop 1
    v_permlane32_swap_b32 v5, v4
    s_nop 1
    v_add_f32 v4, v4, v5
    s_mov_b32 s76, {LOG2E}
    v_mul_f32 v4, s76, v4
    v_sub_f32 v4, 0, v4
    v_exp_f32 v4, v4
    s_nop 0
    v_add_f32 v4, 1.0, v4
    v_rcp_f32 v4, v4
    s_nop 1
    v_readfirstlane_b32 s100, v4          ; gate g
    """)
    a(f"""
    s_lshl_b32 s76, s70, 4
    v_mov_b32 v247, 1
    v_mov_b32 v248, s76
    s_waitcnt vmcnt(0)
    """)
    stamp(5)
    if qprof: stamp(8, True)
    a(f"""
    s_mov_b64 exec, 1
    buffer_atomic_add v247, v248, s[48:51], 0 offen sc1
    s_mov_b32 s78, {SPIN_G}
    L_qpoll:
    buffer_load_dword v249, v248, s[48:51], 0 offen sc1
    s_waitcnt vmcnt(0)
    v_readfirstlane_b32 s76, v249
    s_cmp_ge_u32 s76, 16
    s_cbranch_scc1 L_qgo
    s_sub_u32 s78, s78, 1
    s_cmp_eq_u32 s78, 0
    s_cbranch_scc1 L_qgo
    s_sleep 1
    s_branch L_qpoll
    L_qgo:
    s_mov_b64 exec, -1
    """)
    stamp(6)
    if qprof: stamp(9, True)
    if qprof: a(f"s_sub_u32 s101, {SPIN_G}, s78")
    a(f"""
    v_lshrrev_b32 v245, 5, v240
    v_and_b32 v246, 31, v240
    v_lshlrev_b32 v247, 14, v245
    v_lshlrev_b32 v248, 4, v246
    v_add_u32 v247, v247, v248
    s_lshl_b32 s76, s70, 16
    s_lshl_b32 s77, s72, 9
    s_add_u32 s76, s76, s77
    """)
    for hp in range(2):
        for kq in range(4):
            r = (hp * 4 + kq) * 4
            a(f"s_add_u32 s77, s76, {(hp*8+kq)*4096}")
            a(f"buffer_load_dwordx4 v[{r}:{r+3}], v247, s[32:35], s77 offen sc1")
    a(f"""
    v_mul_u32_u24 v245, 272, v245
    v_lshlrev_b32 v246, 3, v246
    v_add_u32 v245, v245, v246
    v_add_u32 v245, {Q_LDS}, v245
    """)
    for hp in range(2):
        a(f"s_waitcnt vmcnt({4*(1-hp)})")
        b0 = hp * 16
        for x in range(4):
            a(f"v_add_f32 v{b0+x}, v{b0+x}, v{b0+4+x}")
            a(f"v_add_f32 v{b0+8+x}, v{b0+8+x}, v{b0+12+x}")
        for x in range(4):
            a(f"v_add_f32 v{b0+x}, v{b0+x}, v{b0+8+x}")
        a(f"v_cvt_pk_bf16_f32 v{32+2*hp}, v{b0}, v{b0+1}")
        a(f"v_cvt_pk_bf16_f32 v{33+2*hp}, v{b0+2}, v{b0+3}")
        a(f"ds_write_b64 v245, v[{32+2*hp}:{33+2*hp}] offset:{hp*544}")
    a(f"""
    v_mov_b32 v243, 1
    v_mov_b32 v244, {FLAG}
    s_waitcnt lgkmcnt(0)
    ds_write_b32 v244, v243
    s_branch L_loads
    L_others:
    s_barrier
    L_loads:
    """)
    for t in range(8):
        for j in range(4):
            r = (t * 4 + j) * 4
            a(f"buffer_load_dwordx4 v[{r}:{r+3}], v254, s[24:27], s{40+t} offen offset:{j*64}{NT}")
    for kk in range(16):
        r = 128 + kk * 4
        a(f"buffer_load_dwordx4 v[{r}:{r+3}], v255, s[28:31], s{40+(kk>>2)} offen offset:{(kk&3)*1024}{NT}")
    a("s_setprio 0")
    stamp(1)
    a(f"""
    v_mov_b32 v244, {FLAG}
    s_mov_b32 s78, {SPIN_L}
    L_fpoll:
    ds_read_b32 v243, v244
    s_waitcnt lgkmcnt(0)
    v_readfirstlane_b32 s76, v243
    s_cmp_lg_u32 s76, 0
    s_cbranch_scc1 L_fgo
    s_sub_u32 s78, s78, 1
    s_cmp_eq_u32 s78, 0
    s_cbranch_scc1 L_fgo
    s_sleep 2
    s_branch L_fpoll
    L_fgo:
    v_lshrrev_b32 v243, 2, v241
    v_mul_u32_u24 v243, 272, v243
    v_lshlrev_b32 v244, 4, v242
    v_add_u32 v243, v243, v244
    """)
    for j in range(4):
        a(f"ds_read_b128 v[{224+4*j}:{227+4*j}], v243 offset:{Q_LDS + j*64}")
    a("""
    v_mov_b32 v248, 0x3f803f80
    v_mov_b32 v249, 0x3f803f80
    v_mov_b32 v250, 0x3f803f80
    v_mov_b32 v251, 0x3f803f80
    """)
    stamp(2)
    a("s_waitcnt vmcnt(32) lgkmcnt(0)")
    def qk(ts):
        for j in range(4):
            for t in ts:
                c = "0" if j == 0 else f"v[{192+4*t}:{195+4*t}]"
                k = (t * 4 + j) * 4
                a(f"v_mfma_f32_16x16x32_bf16 v[{192+4*t}:{195+4*t}], v[{k}:{k+3}], v[{224+4*j}:{227+4*j}], {c}")
    qk(range(4))
    for kk in range(16, 32):
        r = (kk - 16) * 4
        a(f"buffer_load_dwordx4 v[{r}:{r+3}], v255, s[28:31], s{40+(kk>>2)} offen offset:{(kk&3)*1024}{NT}")
    a("s_waitcnt vmcnt(32)")
    qk(range(4, 8))
    a(f"""
    v_lshlrev_b32 v243, 10, v242
    v_lshlrev_b32 v244, 4, v241
    v_add_u32 v243, v243, v244
    s_lshl_b32 s76, s3, 14
    """)
    for ii in range(4):
        a(f"s_add_u32 s77, s76, {ii*4096}")
        a(f"buffer_load_dwordx4 v[{224+4*ii}:{227+4*ii}], v243, s[80:83], s77 offen{NT}")
    stamp(3)
    a("s_nop 2")
    S = lambda i: f"v{192+i}"
    for ch in range(4):
        b = ch * 8
        a(f"v_max3_f32 v{244+ch}, {S(b)}, {S(b+1)}, {S(b+2)}")
    for ch in range(4):
        b = ch * 8
        a(f"v_max3_f32 v{244+ch}, v{244+ch}, {S(b+3)}, {S(b+4)}")
    for ch in range(4):
        b = ch * 8
        a(f"v_max3_f32 v{244+ch}, v{244+ch}, {S(b+5)}, {S(b+6)}")
    for ch in range(4):
        b = ch * 8
        a(f"v_max_f32 v{244+ch}, v{244+ch}, {S(b+7)}")
    a(f"""
    v_max3_f32 v244, v244, v245, v246
    v_max_f32 v244, v244, v247
    v_mov_b32 v245, v244
    s_nop 1
    v_permlane16_swap_b32 v245, v244
    s_nop 1
    v_max_f32 v244, v244, v245
    v_mov_b32 v245, v244
    s_nop 1
    v_permlane32_swap_b32 v245, v244
    s_nop 1
    v_max_f32 v244, v244, v245
    s_mov_b32 s76, {C_SCALE}
    v_mul_f32 v244, s76, v244
    """)
    for i in range(32):
        a(f"v_fma_f32 {S(i)}, {S(i)}, s76, -v244")
    for i in range(32):
        a(f"v_exp_f32 {S(i)}, {S(i)}")
    a("s_nop 0")
    for u in range(4):
        for h in range(4):
            i0 = u * 8 + h * 2
            a(f"v_cvt_pk_bf16_f32 v{64+4*u+h}, {S(i0)}, {S(i0+1)}")
    a("""
    s_mov_b32 s76, 0x05040100
    s_mov_b32 s77, 0x07060302
    """)
    waits = [28, 20, 12, 4]
    for u in range(4):
        vb = 128 + u * 32 if u < 2 else (u - 2) * 32
        a(f"s_waitcnt vmcnt({waits[u]})")
        for e in range(8):
            d = e >> 1
            sel = "s76" if (e & 1) == 0 else "s77"
            for u2 in range(4):
                lo = vb + (2 * u2) * 4 + d
                hi = vb + (2 * u2 + 1) * 4 + d
                a(f"v_perm_b32 v{192+4*e+u2}, v{hi}, v{lo}, {sel}")
        c = "0" if u == 0 else "v[112:115]"
        a(f"v_mfma_f32_16x16x32_bf16 v[112:115], v[{64+4*u}:{67+4*u}], v[248:251], {c}")
        for e in range(8):
            c = "0" if u == 0 else f"v[{80+4*e}:{83+4*e}]"
            a(f"v_mfma_f32_16x16x32_bf16 v[{80+4*e}:{83+4*e}], v[{64+4*u}:{67+4*u}], v[{192+4*e}:{195+4*e}], {c}")
    a(f"""
    s_mul_i32 s76, s3, {16*288}
    v_mul_u32_u24 v243, 288, v242
    v_lshlrev_b32 v245, 4, v241
    v_add_u32 v243, v243, v245
    v_add_u32 v243, s76, v243
    s_lshl_b32 s76, s3, 11
    v_lshlrev_b32 v245, 9, v242
    v_lshlrev_b32 v246, 5, v241
    v_add_u32 v245, v245, v246
    v_add_u32 v245, s76, v245
    s_lshl_b32 s76, s3, 3
    v_lshlrev_b32 v246, 6, v242
    v_add_u32 v246, s76, v246
    s_waitcnt vmcnt(0)
    """)
    for ii in range(4):
        a(f"ds_write_b128 v243, v[{224+4*ii}:{227+4*ii}] offset:{WO_LDS + ii*4*288}")
    for e in range(8):
        a(f"v_mov_b32 v{192+e}, v{80+4*e}")
    a(f"""
    v_mov_b32 v200, v244
    v_mov_b32 v201, v112
    ds_write_b128 v245, v[192:195] offset:{PART}
    ds_write_b128 v245, v[196:199] offset:{PART+16}
    s_mov_b32 exec_lo, 0x00100001
    s_mov_b32 exec_hi, 0x10000100
    ds_write_b64 v246, v[200:201] offset:{ML}
    s_mov_b64 exec, -1
    """)
    stamp(4)
    a("""
    s_waitcnt lgkmcnt(0)
    s_barrier
    s_cmp_gt_u32 s3, 1
    s_cbranch_scc1 L_tr
    """)
    a(f"""
    v_lshrrev_b32 v243, 5, v240
    s_lshl_b32 s76, s3, 1
    v_add_u32 v243, s76, v243            ; head
    v_lshlrev_b32 v244, 6, v243          ; head*64
    v_and_b32 v245, 31, v240
    v_lshlrev_b32 v245, 4, v245
    v_lshlrev_b32 v246, 9, v243
    v_add_u32 v245, v245, v246           ; head*512 + (l&31)*16
    """)
    for q in range(4):
        a(f"ds_read_b128 v[{4*q}:{4*q+3}], v244 offset:{ML + 16*q}")
    for w in range(8):
        a(f"ds_read_b128 v[{16+4*w}:{19+4*w}], v245 offset:{PART + w*2048}")
    a(f"""
    s_waitcnt lgkmcnt(8)
    v_max3_f32 v48, v0, v2, v4
    v_max3_f32 v49, v6, v8, v10
    v_max3_f32 v48, v48, v12, v14
    v_max_f32 v48, v48, v49             ; M
    """)
    for w in range(8):
        a(f"v_sub_f32 v{2*w}, v{2*w}, v48")
    for w in range(8):
        a(f"v_exp_f32 v{2*w}, v{2*w}")
    a("s_nop 0")
    a("v_mul_f32 v49, v0, v1")
    for w in range(1, 8):
        a(f"v_fma_f32 v49, v{2*w}, v{2*w+1}, v49")
    a("s_waitcnt lgkmcnt(0)")
    for x in range(4):
        a(f"v_mul_f32 v{52+x}, v0, v{16+x}")
    for w in range(1, 8):
        for x in range(4):
            a(f"v_fma_f32 v{52+x}, v{2*w}, v{16+4*w+x}, v{52+x}")
    a(f"""
    s_lshl_b32 s76, s3, 10
    s_add_u32 s76, s76, s79
    s_add_u32 s76, s76, {AR}
    buffer_store_dwordx4 v[52:55], v255, s[32:35], s76 offen sc1
    v_lshlrev_b32 v243, 3, v243
    s_add_u32 s77, s79, {AR + 2048}
    s_mov_b32 exec_lo, 1
    s_mov_b32 exec_hi, 1
    buffer_store_dwordx2 v[48:49], v243, s[32:35], s77 offen sc1
    s_mov_b64 exec, -1
    L_tr:
    v_lshrrev_b32 v243, 2, v241
    v_lshlrev_b32 v244, 3, v242
    v_add_u32 v243, v243, v244
    v_mul_u32_u24 v243, 288, v243
    v_and_b32 v244, 3, v241
    v_lshlrev_b32 v244, 3, v244
    v_add_u32 v243, v243, v244
    s_lshl_b32 s76, s3, 5
    v_add_u32 v243, s76, v243
    """)
    for ks in range(4):
        for half in range(2):
            r = 128 + ks * 4 + half * 2
            a(f"ds_read_b64_tr_b16 v[{r}:{r+1}], v243 offset:{WO_LDS + ks*9216 + half*1152}")
    a(f"""
    s_lshl_b32 s76, s70, 4
    s_lshl_b32 s77, s3, 1
    s_add_u32 s76, s76, s77
    s_lshl_b32 s76, s76, 12
    s_add_u32 s76, s76, {AR}
    s_lshr_b32 s77, s71, 2              ; hq
    s_lshl_b32 s78, s77, 9
    s_add_u32 s4, s76, s78              ; O0 soffset
    s_add_u32 s5, s4, 4096              ; O1
    s_lshl_b32 s78, s77, 3
    s_add_u32 s6, s76, s78
    s_add_u32 s6, s6, 2048              ; ML0
    s_add_u32 s7, s6, 4096              ; ML1
    v_lshlrev_b32 v243, 3, v240         ; l*8
    v_mov_b32 v244, 0
    v_lshlrev_b32 v245, 4, v241         ; counter (l&15)*16
    s_mov_b32 s78, {SPIN_G}
    L_h1:
    buffer_load_dwordx2 v[0:1], v243, s[32:35], s4 offen sc1
    buffer_load_dwordx2 v[2:3], v243, s[32:35], s5 offen sc1
    buffer_load_dwordx2 v[4:5], v244, s[32:35], s6 offen sc1
    buffer_load_dwordx2 v[6:7], v244, s[32:35], s7 offen sc1
    buffer_load_dword v8, v245, s[48:51], 0 offen sc1
    s_waitcnt vmcnt(0)
    v_max3_u32 v9, v0, v1, v2
    v_max3_u32 v10, v3, v4, v5
    v_max3_u32 v9, v9, v6, v7
    v_max_u32 v9, v9, v10
    v_cmp_eq_u32 vcc, -1, v9
    v_cmp_gt_u32 s[10:11], 16, v8
    s_nop 1
    s_or_b64 vcc, vcc, s[10:11]
    s_cbranch_vccz L_h1go
    s_sub_u32 s78, s78, 1
    s_cmp_eq_u32 s78, 0
    s_cbranch_scc1 L_h1go
    s_branch L_h1
    L_h1go:
    """)
    stamp(7)
    a(f"""
    v_max_f32 v9, v4, v6
    v_sub_f32 v4, v4, v9
    v_sub_f32 v6, v6, v9
    v_exp_f32 v4, v4
    v_exp_f32 v6, v6
    s_nop 0
    v_mul_f32 v10, v4, v5
    v_fma_f32 v10, v6, v7, v10
    v_rcp_f32 v10, v10
    v_mul_f32 v0, v0, v4
    v_mul_f32 v1, v1, v4
    v_fma_f32 v0, v2, v6, v0
    v_fma_f32 v1, v3, v6, v1
    v_mul_f32 v0, v0, v10
    v_mul_f32 v1, v1, v10
    v_cvt_pk_bf16_f32 v0, v0, v1
    s_mul_i32 s76, s3, 272
    v_lshlrev_b32 v243, 2, v240
    v_add_u32 v243, s76, v243
    ds_write_b32 v243, v0 offset:{O_LDS}
    v_and_b32 v244, 7, v240
    v_mul_u32_u24 v244, 272, v244
    v_lshlrev_b32 v245, 4, v242
    v_add_u32 v244, v244, v245
    s_waitcnt lgkmcnt(0)
    s_barrier
    """)
    for ks in range(4):
        a(f"ds_read_b128 v[{144+4*ks}:{147+4*ks}], v244 offset:{O_LDS + ks*64}")
    a(f"""
    v_lshlrev_b32 v243, 9, v241
    v_lshlrev_b32 v245, 4, v242
    v_add_u32 v243, v243, v245
    s_lshl_b32 s76, s3, 6
    s_add_u32 s76, s76, s79
    s_add_u32 s76, s76, {OP}
    """)
    for ks in range(4):
        a(f"s_waitcnt lgkmcnt({3-ks})")
        c = "0" if ks == 0 else "v[160:163]"
        a(f"v_mfma_f32_16x16x32_bf16 v[160:163], v[{128+4*ks}:{131+4*ks}], v[{144+4*ks}:{147+4*ks}], {c}")
    a(f"""
    s_mov_b32 exec_lo, 0x00ff00ff
    s_mov_b32 exec_hi, 0x00ff00ff
    s_nop 7
    buffer_store_dwordx4 v[160:163], v243, s[32:35], s76 offen sc1
    s_mov_b64 exec, -1
    """)
    stamp(8)
    a(f"""
    s_cmp_lg_u32 s3, 0
    s_cbranch_scc1 L_fin
    s_lshr_b32 s4, s2, 5
    s_and_b32 s5, s2, 31
    s_lshr_b32 s6, s5, 3
    s_and_b32 s7, s5, 7
    s_lshl_b32 s76, s6, 12
    s_lshl_b32 s77, s4, 9
    s_add_u32 s76, s76, s77
    s_lshl_b32 s77, s7, 6
    s_add_u32 s76, s76, s77
    s_add_u32 s8, s76, {OP}
    s_add_u32 s9, s8, {4*16*4096}
    s_add_u32 s10, s9, {4*16*4096}
    s_add_u32 s11, s10, {4*16*4096}
    ; voffset = ((l>>4)*16 + ((l>>2)&3)*4)*4096 + (l&3)*16
    v_lshlrev_b32 v243, 16, v242
    v_lshrrev_b32 v244, 2, v241
    v_lshlrev_b32 v244, 14, v244
    v_add_u32 v243, v243, v244
    v_and_b32 v244, 3, v240
    v_lshlrev_b32 v244, 4, v244
    v_add_u32 v243, v243, v244
    v_mov_b32 v246, s100
    v_sub_f32 v247, 1.0, v246
    v_and_b32 v245, 1, v242
    v_cmp_eq_u32 vcc, 1, v245
    s_nop 1
    v_cndmask_b32 v246, v246, v247, vcc
    s_mov_b32 s56, s84
    s_mov_b32 s57, s85
    s_mov_b32 s58, 8192
    s_mov_b32 s59, 0x00020000
    s_lshl_b32 s12, s4, 10
    s_lshl_b32 s13, s5, 5
    s_add_u32 s12, s12, s13
    s_mov_b32 s78, {SPIN_G}
    L_h2:
    buffer_load_dwordx4 v[0:3], v243, s[32:35], s8 offen sc1
    buffer_load_dwordx4 v[4:7], v243, s[32:35], s9 offen sc1
    buffer_load_dwordx4 v[8:11], v243, s[32:35], s10 offen sc1
    buffer_load_dwordx4 v[12:15], v243, s[32:35], s11 offen sc1
    s_waitcnt vmcnt(0)
    v_max3_u32 v16, v0, v1, v2
    v_max3_u32 v17, v3, v4, v5
    v_max3_u32 v18, v6, v7, v8
    v_max3_u32 v19, v9, v10, v11
    v_max3_u32 v16, v16, v12, v13
    v_max3_u32 v17, v17, v14, v15
    v_max3_u32 v16, v16, v17, v18
    v_max_u32 v16, v16, v19
    v_cmp_eq_u32 vcc, -1, v16
    s_nop 1
    s_cbranch_vccz L_h2go
    s_sub_u32 s78, s78, 1
    s_cmp_eq_u32 s78, 0
    s_cbranch_scc1 L_h2go
    s_branch L_h2
    L_h2go:
    """)
    for x in range(4):
        a(f"v_add_f32 v{x}, v{x}, v{4+x}")
        a(f"v_add_f32 v{8+x}, v{8+x}, v{12+x}")
    for x in range(4):
        a(f"v_add_f32 v{x}, v{x}, v{8+x}")
    for x in range(4):
        a(f"v_mul_f32 v{x}, v{x}, v246")
    for ror in (4, 8):
        a("s_nop 1")
        for x in range(4):
            a(f"v_add_f32_dpp v{x}, v{x}, v{x} row_ror:{ror} row_mask:0xf bank_mask:0xf")
    for sw in ("16", "32"):
        for x in range(4):
            a(f"v_mov_b32 v{4+x}, v{x}")
        a("s_nop 1")
        for x in range(4):
            a(f"v_permlane{sw}_swap_b32 v{4+x}, v{x}")
        a("s_nop 1")
        for x in range(4):
            a(f"v_add_f32 v{x}, v{x}, v{4+x}")
    a(f"""
    v_cvt_pk_bf16_f32 v0, v0, v1
    v_cvt_pk_bf16_f32 v1, v2, v3
    v_lshlrev_b32 v243, 3, v240
    s_mov_b64 exec, 0xf
    buffer_store_dwordx2 v[0:1], v243, s[56:59], s12 offen
    s_mov_b64 exec, -1
    L_fin:
    """)
    if prof:
        stamp(9)
        a(f"""
        s_waitcnt lgkmcnt(0)
        s_add_u32 s32, s88, {STAMP_OFF}
        s_addc_u32 s33, s89, 0
        s_mov_b32 s34, 0x100000
        s_mov_b32 s35, 0x00020000
        s_lshl_b32 s36, s2, 3
        s_add_u32 s36, s36, s3
        s_mul_i32 s36, s36, 48
        v_mov_b32 v4, 0
        s_mov_b64 exec, 1
        """)
        for e in range(10):
            a(f"v_mov_b32 v{8+e}, s{stamp_regs[e]}")
        a("v_mov_b32 v18, s101" if qprof else "v_mov_b32 v18, 0")
        a("v_mov_b32 v19, 0")
        for q in range(3):
            a(f"buffer_store_dwordx4 v[{8+4*q}:{11+4*q}], v4, s[32:35], s36 offen offset:{16*q}")
    a("""
    s_waitcnt vmcnt(0)
    L_end:
    """)
    return wrap(a.text(), 256, 512, LDS_SIZE)

if __name__ == "__main__":
    open("main.s", "w").write(gen(False))
    open("main_prof.s", "w").write(gen(True))
    open("main_qprof.s", "w").write(gen(True, {"qprof": True}))
```
